```python
import torch

def _softmax(x, axis=-1):
    return torch.softmax(x, dim=axis)
def _gelu(x):
    return torch.nn.functional.gelu(x, approximate="tanh")
def _silu(x):
    return torch.nn.functional.silu(x)
def _sigmoid(x):
    return torch.sigmoid(x)
def _layernorm(x, axis=-1, eps=1e-5):
    m = x.mean(dim=axis, keepdim=True)
    v = x.var(dim=axis, keepdim=True, unbiased=False)
    return (x - m) / torch.sqrt(v + eps)
def _scatter_add(tgt, idx, src, axis=0):
    return tgt.clone().index_add_(axis, idx, src)
def _segment_sum(src, seg, n):
    out = torch.zeros((n,) + src.shape[1:], dtype=src.dtype)
    return out.index_add_(0, seg, src)
def _pad(x, pw):
    flat = tuple(v for pair in reversed(pw) for v in pair)
    return torch.nn.functional.pad(x, flat)

kernel_name = 'standalone__instancenorm__sampling'

def setup_inputs():

    _w = (lambda a: (lambda t: t.to(torch.bfloat16) if t.is_floating_point() else t)(torch.as_tensor(a)))
    B, C, H, W = 64, 512, 8, 32
    return {
        "x": _w(abs((lambda *s: torch.randn(*s, dtype=torch.bfloat16) * 0.05)(B, C, H, W))),
        "g": _w((lambda *s: torch.randn(*s, dtype=torch.bfloat16) * 0.05)(C) + 1.0),
        "b": _w((lambda *s: torch.randn(*s, dtype=torch.bfloat16) * 0.4)(C)),
    }

def reference(x, g, b):
    mu = x.mean(axis=(-2, -1), keepdims=True)
    var = ((x - mu) ** 2).mean(axis=(-2, -1), keepdims=True)
    xhat = (x - mu) / torch.sqrt(var + 1e-5)
    return xhat * g.reshape(1, -1, 1, 1) + b.reshape(1, -1, 1, 1)
```

```python
import sys, re
def patch(s, kind):
    nwg = int(re.search(r"grid=\((\d+)", s).group(1))
    nv = int(re.search(r"next_free_vgpr (\d+)", s).group(1))
    V = (nv + 1) & ~1
    s = s.replace("_kernel:\n", "_kernel:\n    s_memrealtime s[40:41]\n    s_load_dwordx2 s[22:23], s[0:1], 32\n    s_load_dwordx2 s[26:27], s[0:1], 24\n", 1)
    s = re.sub(r"(    s_waitcnt vmcnt\(\d+\)    ; DATA\n)", r"\1    s_memrealtime s[44:45]\n", s, count=1)
    o = []
    e = o.append
    e("    v_readfirstlane_b32 s20, v0")
    e("    s_nop 3")
    e("    s_cmp_lg_u32 s20, 0")
    e("    s_cbranch_scc1 L_end")
    e("    s_waitcnt vmcnt(0)")
    e("    s_memrealtime s[46:47]")
    e("    s_getreg_b32 s42, hwreg(HW_REG_XCC_ID)")
    e("    s_and_b32 s42, s42, 7")
    e("    s_waitcnt lgkmcnt(0)")
    e("    s_mov_b64 exec, 1")
    e("    s_lshl_b32 s21, s42, 2")
    e(f"    v_mov_b32 v{V}, s21")
    e("    s_cmp_lt_u32 s2, 8")
    e("    s_cbranch_scc0 L_notfirst")
    e(f"    v_mov_b32 v{V+1}, s40")
    e(f"    global_store_dword v{V}, v{V+1}, s[22:23] sc0 sc1")
    e("L_notfirst:")
    e(f"    s_cmp_ge_u32 s2, {nwg-8}")
    e("    s_cbranch_scc0 L_notlast")
    e(f"    v_mov_b32 v{V+1}, s46")
    e(f"    global_store_dword v{V}, v{V+1}, s[22:23] offset:32 sc0 sc1")
    e("L_notlast:")
    e("    s_cmp_lg_u32 s2, 0")
    e("    s_cbranch_scc1 L_end")
    def spin(lbl):
        e(f"{lbl}:")
        e("    s_memrealtime s[16:17]")
        e("    s_waitcnt lgkmcnt(0)")
        e("    s_sub_u32 s18, s16, s14")
        e("    s_cmp_lt_i32 s18, 0")
        e(f"    s_cbranch_scc1 {lbl}")
    e("    s_add_u32 s14, s40, 2000")
    spin("L_spin1")
    e(f"    v_mov_b32 v{V}, 0")
    for i in range(4):
        e(f"    global_load_dwordx4 v[{V+2+4*i}:{V+5+4*i}], v{V}, s[22:23] offset:{16*i} sc0 sc1")
    e("    s_waitcnt vmcnt(0)")
    for i in range(16):
        e(f"    v_readfirstlane_b32 s{48+i}, v{V+2+i}")
    e("    s_nop 3")
    e("    s_mov_b32 s30, s48"); e("    s_mov_b32 s31, s48"); e("    s_mov_b32 s32, s56")
    for i in range(1, 8):
        e(f"    s_min_u32 s30, s30, s{48+i}"); e(f"    s_max_u32 s31, s31, s{48+i}"); e(f"    s_max_u32 s32, s32, s{56+i}")
    if kind == "rot":
        e("    s_mul_i32 s33, s42, 500")
        e("    s_bfe_u32 s34, s26, 0x1000c")
        e("    s_mul_i32 s34, s34, 5000")
        e("    s_add_u32 s33, s33, s34")
    elif kind == "skew":
        e("    s_sub_u32 s33, s31, s30"); e("    s_mul_i32 s33, s33, 10")
    elif kind == "data":
        e("    s_sub_u32 s33, s44, s40"); e("    s_mul_i32 s33, s33, 10")
    elif kind == "end":
        e("    s_sub_u32 s33, s32, s30"); e("    s_mul_i32 s33, s33, 10")
    elif kind == "half":
        e("    s_mov_b32 s33, 0")
        for i in range(4):
            e(f"    s_add_u32 s33, s33, s{52+i}"); e(f"    s_sub_u32 s33, s33, s{48+i}")
        e("    s_mul_i32 s33, s33, 10"); e("    s_ashr_i32 s33, s33, 2"); e("    s_add_u32 s33, s33, 1000")
    elif kind.startswith("late"):
        k = int(kind[4:])
        e(f"    s_sub_u32 s33, s{48+k}, s30"); e("    s_mul_i32 s33, s33, 10")
    elif kind.startswith("endx"):
        k = int(kind[4:])
        e(f"    s_sub_u32 s33, s{56+k}, s30"); e("    s_mul_i32 s33, s33, 10")
    elif kind == "zero":
        e("    s_mov_b32 s33, 0")
    elif kind == "wg0":
        e("    s_sub_u32 s33, s40, s30"); e("    s_mul_i32 s33, s33, 10")
    e("    s_min_u32 s33, s33, 20000")
    e("    s_add_u32 s14, s40, 3000")
    e("    s_add_u32 s14, s14, s33")
    spin("L_spin2")
    s = s.replace("L_end:\n", "\n".join(o) + "\nL_end:\n")
    nn = V + 18
    s = re.sub(r"next_free_vgpr \d+", f"next_free_vgpr {nn}", s)
    s = re.sub(r"accum_offset \d+", f"accum_offset {(nn+3)&~3}", s)
    s = re.sub(r"next_free_sgpr \d+", "next_free_sgpr 72", s)
    return s
open(sys.argv[2], "w").write(patch(open(sys.argv[1]).read(), sys.argv[3]))
```

```python
import sys, re
def patch(s, kind):
    nwg = int(re.search(r"grid=\((\d+)", s).group(1))
    nv = int(re.search(r"next_free_vgpr (\d+)", s).group(1))
    V = (nv + 1) & ~1
    s = s.replace("_kernel:\n", "_kernel:\n    s_memrealtime s[40:41]\n    s_load_dwordx2 s[62:63], s[0:1], 32\n    s_load_dwordx2 s[64:65], s[0:1], 24\n", 1)
    s = re.sub(r"(    s_waitcnt vmcnt\(\d+\)    ; DATA\n)", r"\1    s_memrealtime s[44:45]\n", s, count=1)
    o = []
    e = o.append
    e("    v_readfirstlane_b32 s66, v0")
    e("    s_nop 3")
    e("    s_cmp_lg_u32 s66, 0")
    e("    s_cbranch_scc1 L_end")
    e("    s_waitcnt vmcnt(0)")
    e("    s_memrealtime s[46:47]")
    e("    s_getreg_b32 s42, hwreg(HW_REG_XCC_ID)")
    e("    s_and_b32 s42, s42, 7")
    e("    s_waitcnt lgkmcnt(0)")
    e("    s_mov_b64 exec, 1")
    e("    s_lshl_b32 s67, s42, 2")
    e(f"    v_mov_b32 v{V}, s67")
    e("    s_cmp_lt_u32 s2, 8")
    e("    s_cbranch_scc0 L_notfirst")
    e(f"    v_mov_b32 v{V+1}, s40")
    e(f"    global_store_dword v{V}, v{V+1}, s[62:63] sc0 sc1")
    e("L_notfirst:")
    e(f"    s_cmp_ge_u32 s2, {nwg-8}")
    e("    s_cbranch_scc0 L_notlast")
    e(f"    v_mov_b32 v{V+1}, s46")
    e(f"    global_store_dword v{V}, v{V+1}, s[62:63] offset:32 sc0 sc1")
    e("L_notlast:")
    e("    s_cmp_lg_u32 s2, 0")
    e("    s_cbranch_scc1 L_end")
    def spin(lbl):
        e(f"{lbl}:")
        e("    s_memrealtime s[70:71]")
        e("    s_waitcnt lgkmcnt(0)")
        e("    s_sub_u32 s69, s70, s68")
        e("    s_cmp_lt_i32 s69, 0")
        e(f"    s_cbranch_scc1 {lbl}")
    e("    s_add_u32 s68, s40, 2000")
    spin("L_spin1")
    e(f"    v_mov_b32 v{V}, 0")
    for i in range(4):
        e(f"    global_load_dwordx4 v[{V+2+4*i}:{V+5+4*i}], v{V}, s[62:63] offset:{16*i} sc0 sc1")
    e("    s_waitcnt vmcnt(0)")
    for i in range(16):
        e(f"    v_readfirstlane_b32 s{48+i}, v{V+2+i}")
    e("    s_nop 3")
    e("    s_mov_b32 s30, s48"); e("    s_mov_b32 s31, s48"); e("    s_mov_b32 s32, s56")
    for i in range(1, 8):
        e(f"    s_min_u32 s30, s30, s{48+i}"); e(f"    s_max_u32 s31, s31, s{48+i}"); e(f"    s_max_u32 s32, s32, s{56+i}")
    if kind == "rot":
        e("    s_mul_i32 s33, s42, 500")
        e("    s_bfe_u32 s34, s64, 0x1000c")
        e("    s_mul_i32 s34, s34, 5000")
        e("    s_add_u32 s33, s33, s34")
    elif kind == "skew":
        e("    s_sub_u32 s33, s31, s30"); e("    s_mul_i32 s33, s33, 10")
    elif kind == "data":
        e("    s_sub_u32 s33, s44, s40"); e("    s_mul_i32 s33, s33, 10")
    elif kind == "end":
        e("    s_sub_u32 s33, s32, s30"); e("    s_mul_i32 s33, s33, 10")
    elif kind == "half":
        e("    s_mov_b32 s33, 0")
        for i in range(4):
            e(f"    s_add_u32 s33, s33, s{52+i}"); e(f"    s_sub_u32 s33, s33, s{48+i}")
        e("    s_mul_i32 s33, s33, 10"); e("    s_ashr_i32 s33, s33, 2"); e("    s_add_u32 s33, s33, 1000")
    elif kind.startswith("late"):
        k = int(kind[4:])
        e(f"    s_sub_u32 s33, s{48+k}, s30"); e("    s_mul_i32 s33, s33, 10")
    elif kind.startswith("endx"):
        k = int(kind[4:])
        e(f"    s_sub_u32 s33, s{56+k}, s30"); e("    s_mul_i32 s33, s33, 10")
    elif kind == "zero":
        e("    s_mov_b32 s33, 0")
    elif kind == "wg0":
        e("    s_sub_u32 s33, s40, s30"); e("    s_mul_i32 s33, s33, 10")
    e("    s_min_u32 s33, s33, 20000")
    e("    s_add_u32 s68, s40, 3000")
    e("    s_add_u32 s68, s68, s33")
    spin("L_spin2")
    s = s.replace("L_end:\n", "\n".join(o) + "\nL_end:\n")
    nn = V + 18
    s = re.sub(r"next_free_vgpr \d+", f"next_free_vgpr {nn}", s)
    s = re.sub(r"accum_offset \d+", f"accum_offset {(nn+3)&~3}", s)
    s = re.sub(r"next_free_sgpr \d+", "next_free_sgpr 76", s)
    return s
open(sys.argv[2], "w").write(patch(open(sys.argv[1]).read(), sys.argv[3]))
```

```python
import sys, re
def patch(s):
    threads = int(re.search(r"block=\((\d+)", s).group(1))
    nwg = int(re.search(r"grid=\((\d+)", s).group(1))
    step = nwg // 64
    nv = int(re.search(r"next_free_vgpr (\d+)", s).group(1))
    V = (nv + 1) & ~1
    s = s.replace("_kernel:\n", "_kernel:\n    s_memrealtime s[40:41]\n    s_load_dwordx2 s[30:31], s[0:1], 32\n", 1)
    o = []
    e = o.append
    s = s.replace("s_branch L_end", "s_branch L_diag")
    e("L_diag:")
    e("    v_readfirstlane_b32 s32, v0")
    e("    s_waitcnt vmcnt(0)")
    e("    s_memrealtime s[46:47]")
    e("    s_waitcnt lgkmcnt(0)")
    e("    s_mov_b64 exec, 1")
    e(f"    s_cmp_eq_u32 s32, {384 if threads in (512, 576) else threads - 64}")
    e("    s_cbranch_scc0 L_notlast")
    e(f"    s_and_b32 s33, s2, {step - 1}")
    e(f"    s_bfe_u32 s34, s2, {(2 << 16) | 3:#x}")
    e(f"    s_and_b32 s34, s34, {step - 1}")
    e("    s_cmp_eq_u32 s33, s34")
    e("    s_cbranch_scc0 L_end2")
    e(f"    s_lshr_b32 s33, s2, {step.bit_length() - 1}")
    e("    s_cmp_lt_u32 s33, 8")
    e("    s_cbranch_scc1 L_end2")
    e("    s_lshl_b32 s33, s33, 2")
    e(f"    v_mov_b32 v{V}, s33")
    e(f"    v_mov_b32 v{V+1}, s46")
    e(f"    global_store_dword v{V}, v{V+1}, s[30:31] sc0 sc1")
    e("    s_branch L_end2")
    e("L_notlast:")
    e("    s_cmp_lg_u32 s32, 0")
    e("    s_cbranch_scc1 L_end2")
    e("    s_cmp_lt_u32 s2, 8")
    e("    s_cbranch_scc0 L_end2")
    e("    s_lshl_b32 s33, s2, 2")
    e(f"    v_mov_b32 v{V}, s33")
    e(f"    v_mov_b32 v{V+1}, s40")
    e(f"    global_store_dword v{V}, v{V+1}, s[30:31] sc0 sc1")
    e("    s_cmp_lg_u32 s2, 0")
    e("    s_cbranch_scc1 L_end2")
    def spin(lbl):
        e(f"{lbl}:")
        e("    s_memrealtime s[36:37]")
        e("    s_waitcnt lgkmcnt(0)")
        e("    s_sub_u32 s38, s36, s34")
        e("    s_cmp_lt_i32 s38, 0")
        e(f"    s_cbranch_scc1 {lbl}")
    e("    s_add_u32 s34, s40, 2000")
    spin("L_spin1")
    e("    s_mov_b64 exec, -1")
    e(f"    v_lshlrev_b32 v{V}, 2, v0")
    e(f"    global_load_dword v{V+1}, v{V}, s[30:31] sc0 sc1")
    e("    s_waitcnt vmcnt(0)")
    e(f"    v_subrev_u32 v{V+1}, s40, v{V+1}")
    e("    s_mov_b32 s42, 0")
    e("    s_mov_b32 s43, 0")
    for i in range(64):
        e(f"    v_readlane_b32 s44, v{V+1}, {i}")
        e("    s_nop 0")
        e(f"    s_min_i32 s42, s42, s44" if i < 8 else "    s_max_i32 s43, s43, s44")
    e("    s_sub_u32 s33, s43, s42")
    e("    s_mul_i32 s33, s33, 10")
    e("    s_min_u32 s33, s33, 20000")
    e("    s_add_u32 s34, s40, s42")
    e("    s_add_u32 s34, s34, 3000")
    e("    s_add_u32 s34, s34, s33")
    spin("L_spin2")
    e("L_end2:")
    e("    s_endpgm")
    i = s.index("L_end:\n")
    head, tail = s[:i], s[i:]
    s = head + "\n".join(o) + "\n" + tail
    nn = V + 2
    s = re.sub(r"next_free_vgpr \d+", f"next_free_vgpr {nn}", s)
    s = re.sub(r"accum_offset \d+", f"accum_offset {(nn+3)&~3}", s)
    s = re.sub(r"next_free_sgpr \d+", "next_free_sgpr 56", s)
    return s
txt = patch(open(sys.argv[1]).read())
open(sys.argv[2], "w").write(txt)
```
